```python
import torch

def _softmax(x, axis=-1):
    return torch.softmax(x, dim=axis)
def _gelu(x):
    return torch.nn.functional.gelu(x, approximate="tanh")
def _silu(x):
    return torch.nn.functional.silu(x)
def _sigmoid(x):
    return torch.sigmoid(x)
def _layernorm(x, axis=-1, eps=1e-5):
    m = x.mean(dim=axis, keepdim=True)
    v = x.var(dim=axis, keepdim=True, unbiased=False)
    return (x - m) / torch.sqrt(v + eps)
def _scatter_add(tgt, idx, src, axis=0):
    return tgt.clone().index_add_(axis, idx, src)
def _segment_sum(src, seg, n):
    out = torch.zeros((n,) + src.shape[1:], dtype=src.dtype)
    return out.index_add_(0, seg, src)
def _pad(x, pw):
    flat = tuple(v for pair in reversed(pw) for v in pair)
    return torch.nn.functional.pad(x, flat)

kernel_name = 'standalone__grn__sampling'

def setup_inputs():

    _w = (lambda a: (lambda t: t.to(torch.bfloat16) if t.is_floating_point() else t)(torch.as_tensor(a)))
    B, S, D = 512, 32, 640
    return {
        "x": _w((lambda *s: torch.randn(*s, dtype=torch.bfloat16) * 0.05)(B, S, D)),
        "g": _w((lambda *s: torch.randn(*s, dtype=torch.bfloat16) * 0.8)(D) * 0.1),
        "b": _w((lambda *s: torch.randn(*s, dtype=torch.bfloat16) * 0.1)(D) * 0.1),
    }

def reference(x, g, b):
    gx = torch.sqrt((x * x).sum(axis=-2, keepdims=True))
    nx = gx / (gx.mean(axis=-1, keepdims=True) + 1e-6)
    return g * (x * nx) + b + x
```

```python
import sys, re
src, dst = sys.argv[1], sys.argv[2]
K = int(sys.argv[3]) if len(sys.argv) > 3 else 10
s = open(src).read()
m = re.search(r"; @launch grid=\((\d+),1,1\) block=\((\d+),1,1\) lds=(\d+)", s)
s = s.replace(m.group(0), f"; @launch kernel=standalone__grn__sampling_kernel grid=({m.group(1)},1,1) block=({m.group(2)},1,1) lds={m.group(3)}\n; @launch kernel=probe_kernel grid=(1,1,1) block=(64,1,1) lds=0")
s = s.replace("standalone__grn__sampling_kernel:\n", "standalone__grn__sampling_kernel:\n    s_memrealtime s[40:41]\n    s_load_dwordx2 s[36:37], s[0:1], 40\n", 1)
s = s.replace("L_end:\n", """    s_cmp_ge_u32 s2, 64
    s_cbranch_scc1 L_end
    s_mov_b32 s38, 0x1000
    s_mov_b32 s39, 0x20000
    s_lshl_b32 s42, s2, 2
    v_mov_b32 v1, s40
    v_cmp_eq_u32 vcc, 0, v0
    s_and_saveexec_b64 s[44:45], vcc
    s_cbranch_execz L_end
    buffer_store_dword v1, off, s[36:39], s42
L_end:
""", 1)
s = re.sub(r"\.amdhsa_next_free_sgpr \d+", ".amdhsa_next_free_sgpr 64", s)
body = f"""
.text
.globl probe_kernel
.p2align 8
.type probe_kernel,@function
probe_kernel:
    s_memrealtime s[20:21]
    s_load_dwordx2 s[4:5], s[0:1], 40
    s_cmp_ge_u32 s2, 1
    s_cbranch_scc1 LP_end
    s_mov_b32 s6, 0x1000
    s_mov_b32 s7, 0x20000
    v_lshlrev_b32 v1, 2, v0
    s_waitcnt lgkmcnt(0)
    buffer_load_dword v10, v1, s[4:7], 0 offen
    s_waitcnt vmcnt(0)
    s_mov_b32 s10, -1
    s_mov_b32 s9, 0
LP_red:
    s_nop 3
    v_readlane_b32 s14, v10, s9
    s_nop 3
    s_min_u32 s10, s10, s14
    s_add_u32 s9, s9, 1
    s_cmp_lt_u32 s9, 64
    s_cbranch_scc1 LP_red
    s_sub_u32 s18, s20, s10
    s_min_u32 s18, s18, 4000
    s_mul_i32 s18, s18, {K}
LP_wait:
    s_memrealtime s[24:25]
    s_waitcnt lgkmcnt(0)
    s_sub_u32 s19, s24, s20
    s_cmp_lt_u32 s19, s18
    s_cbranch_scc1 LP_wait
LP_end:
    s_endpgm
.section .rodata,"a"
.p2align 6
.amdhsa_kernel probe_kernel
  .amdhsa_next_free_vgpr 16
  .amdhsa_next_free_sgpr 32
  .amdhsa_accum_offset 16
  .amdhsa_group_segment_fixed_size 0
  .amdhsa_kernarg_size 48
  .amdhsa_user_sgpr_count 2
  .amdhsa_user_sgpr_kernarg_segment_ptr 1
  .amdhsa_system_sgpr_workgroup_id_x 1
.end_amdhsa_kernel
"""
open(dst, "w").write(s + body)
```

```python
L = []
A = L.append
A("""; Kernarg layout for this problem (48 bytes, ptrs only, base s[0:1]):
;
; @launch grid=(512,1,1) block=(320,1,1) lds=64
.amdgcn_target "amdgcn-amd-amdhsa--gfx950"
.text
.globl standalone__grn__sampling_kernel
.p2align 8
.type standalone__grn__sampling_kernel,@function
standalone__grn__sampling_kernel:
    s_load_dwordx2 s[4:5], s[0:1], 0        ; x   -> SRD s[4:7]
    s_load_dwordx2 s[8:9], s[0:1], 8        ; g   -> SRD s[8:11]
    s_load_dwordx2 s[12:13], s[0:1], 16     ; b   -> SRD s[12:15]
    s_load_dwordx2 s[16:17], s[0:1], 24
    s_cmpk_ge_u32 s2, 512
    s_cbranch_scc1 L_end
    s_mov_b32 s6, 20971520
    s_mov_b32 s7, 0x20000
    s_mul_i32 s20, s2, 40960
    v_and_b32 v1, 15, v0                    ; c
    v_lshlrev_b32 v1, 4, v1
    v_lshrrev_b32 v2, 6, v0                 ; w
    v_lshl_add_u32 v1, v2, 8, v1
    v_bfe_u32 v3, v0, 4, 2                  ; r
    v_mul_u32_u24 v4, 1280, v3
    v_add_u32 v4, v4, v1
    s_movk_i32 s10, 1280
    s_mov_b32 s11, s7
    s_mov_b32 s14, s10
    s_mov_b32 s15, s7
    v_lshl_add_u32 v5, v3, 2, v1
    s_mov_b32 s30, 0xffff0000
    s_waitcnt lgkmcnt(0)""")
XB = 40
NL = 8
vm = []
for i in range(NL):
    b = XB + 8*i
    A(f"    buffer_load_dwordx4 v[{b+4}:{b+7}], v4, s[4:7], s{20+i} offen nt")
    vm.append(i)
    if i + 1 < NL:
        A(f"    s_add_u32 s{21+i}, s20, {5120*(i+1)}")
    if i == 1:
        A("    buffer_load_dword v16, v5, s[8:11], 0 offen")
        A("    buffer_load_dwordx4 v[12:15], v1, s[12:15], 0 offen")
        vm += ["G", "B"]
A("""    s_mov_b32 s18, s6
    s_mov_b32 s19, s7
    v_cmp_eq_u32 vcc, 3, v3
    v_lshlrev_b32 v6, 2, v2
    v_mov_b32 v7, 0
    v_cndmask_b32 v6, 32, v6, vcc
    v_mov_b32 v2, 1.0
    v_mov_b32 v3, 1.0
    s_mov_b32 s31, 0x3acccccd               ; 1/640
    v_mov_b32 v22, 0x358637bd               ; 1e-6
    ; ---- widen bf16 -> f32 in place and accumulate squares (v24..v31 = 8 columns) ----""")
for i in range(NL):
    b = XB + 8*i
    A(f"    s_waitcnt vmcnt({len(vm)-1-vm.index(i)})")
    for j in range(4):
        A(f"    v_lshlrev_b32 v{b+2*j}, 16, v{b+4+j}")
        A(f"    v_and_b32 v{b+2*j+1}, s30, v{b+4+j}")
    for j in range(4):
        s = f"v[{b+2*j}:{b+2*j+1}]"
        d = f"v[{24+2*j}:{25+2*j}]"
        if i == 0:
            A(f"    v_pk_mul_f32 {d}, {s}, {s}")
        else:
            A(f"    v_pk_fma_f32 {d}, {s}, {s}, {d}")
    if i == 2:
        A("""    v_lshlrev_b32 v17, 16, v16              ; g[2r]
    v_and_b32 v18, s30, v16                 ; g[2r+1]
    v_lshlrev_b32 v8, 16, v12               ; b[0..7] -> v8..v15
    v_and_b32 v9, s30, v12
    v_lshlrev_b32 v10, 16, v13
    v_and_b32 v11, s30, v13
    v_lshlrev_b32 v12, 16, v14
    v_and_b32 v13, s30, v14
    v_lshlrev_b32 v14, 16, v15
    v_and_b32 v15, s30, v15""")
A("""    ; ---- transposing reduction over the 4 row groups: lane row r ends with columns 2r, 2r+1 ----
    s_nop 1
    v_permlane32_swap_b32 v24, v28
    v_permlane32_swap_b32 v25, v29
    v_permlane32_swap_b32 v26, v30
    v_permlane32_swap_b32 v27, v31
    v_pk_add_f32 v[24:25], v[24:25], v[28:29]
    v_pk_add_f32 v[26:27], v[26:27], v[30:31]
    s_nop 1
    v_permlane16_swap_b32 v24, v26
    v_permlane16_swap_b32 v25, v27
    v_pk_add_f32 v[24:25], v[24:25], v[26:27]
    v_sqrt_f32 v24, v24                     ; gx[2r]
    v_sqrt_f32 v25, v25                     ; gx[2r+1]
    s_nop 0
    v_add_f32 v20, v24, v25
    v_mul_f32 v32, v17, v24
    v_mul_f32 v33, v18, v25
    v_add_f32_dpp v20, v20, v20 quad_perm:[1,0,3,2] row_mask:0xf bank_mask:0xf
    v_mov_b32 v34, v32
    v_mov_b32 v35, v33
    v_add_f32_dpp v20, v20, v20 quad_perm:[2,3,0,1] row_mask:0xf bank_mask:0xf
    s_nop 1
    v_add_f32_dpp v20, v20, v20 row_half_mirror row_mask:0xf bank_mask:0xf
    v_permlane16_swap_b32 v32, v34          ; v32 = cols [0,0,4,4]  v34 = [2,2,6,6]
    v_permlane16_swap_b32 v33, v35          ; v33 = cols [1,1,5,5]  v35 = [3,3,7,7]
    v_add_f32_dpp v20, v20, v20 row_mirror row_mask:0xf bank_mask:0xf
    v_mov_b32 v36, v32
    v_mov_b32 v37, v33
    v_add_f32_dpp v20, v20, v20 row_bcast:15 row_mask:0xa bank_mask:0xf
    v_mov_b32 v38, v34
    v_mov_b32 v39, v35
    v_add_f32_dpp v20, v20, v20 row_bcast:31 row_mask:0xc bank_mask:0xf
    ds_write_b32 v6, v20
    v_permlane32_swap_b32 v32, v36          ; v32..v39 = p[0..7]
    v_permlane32_swap_b32 v33, v37
    v_permlane32_swap_b32 v34, v38
    v_permlane32_swap_b32 v35, v39
    s_waitcnt lgkmcnt(0)
    s_barrier
    ds_read_b128 v[28:31], v7
    ds_read_b32 v19, v7 offset:16
    s_waitcnt lgkmcnt(0)
    v_pk_add_f32 v[28:29], v[28:29], v[30:31]
    v_add_f32 v20, v28, v19
    v_add_f32 v20, v20, v29
    v_fma_f32 v20, v20, s31, v22            ; mean + 1e-6
    v_rcp_f32 v20, v20
    s_nop 0""")
for j in range(4):
    A(f"    v_pk_fma_f32 v[{32+2*j}:{33+2*j}], v[{32+2*j}:{33+2*j}], v[20:21], v[2:3] op_sel_hi:[1,0,1]" + ("   ; scale = 1 + p/(mean+eps)" if j == 0 else ""))
for i in range(NL):
    b = XB + 8*i
    for j in range(4):
        A(f"    v_pk_fma_f32 v[{b+2*j}:{b+2*j+1}], v[{b+2*j}:{b+2*j+1}], v[{32+2*j}:{33+2*j}], v[{8+2*j}:{9+2*j}]")
    for j in range(4):
        A(f"    v_cvt_pk_bf16_f32 v{b+j}, v{b+2*j}, v{b+2*j+1}")
    pol = " nt" if i < NL-1 else ""
    A(f"    buffer_store_dwordx4 v[{b}:{b+3}], v4, s[16:19], s{20+i} offen{pol}")
A("""L_end:
    s_endpgm
.section .rodata,"a"
.p2align 6
.amdhsa_kernel standalone__grn__sampling_kernel
  .amdhsa_next_free_vgpr 104
  .amdhsa_next_free_sgpr 32
  .amdhsa_accum_offset 104
  .amdhsa_group_segment_fixed_size 0
  .amdhsa_kernarg_size 48
  .amdhsa_user_sgpr_count 2
  .amdhsa_user_sgpr_kernarg_segment_ptr 1
  .amdhsa_system_sgpr_workgroup_id_x 1
  .amdhsa_float_denorm_mode_32 3
.end_amdhsa_kernel""")
open("standalone__grn__sampling.s", "w").write("\n".join(L) + "\n")
```
